```python
import torch

def _softmax(x, axis=-1):
    return torch.softmax(x, dim=axis)
def _gelu(x):
    return torch.nn.functional.gelu(x, approximate="tanh")
def _silu(x):
    return torch.nn.functional.silu(x)
def _sigmoid(x):
    return torch.sigmoid(x)
def _layernorm(x, axis=-1, eps=1e-5):
    m = x.mean(dim=axis, keepdim=True)
    v = x.var(dim=axis, keepdim=True, unbiased=False)
    return (x - m) / torch.sqrt(v + eps)
def _scatter_add(tgt, idx, src, axis=0):
    return tgt.clone().index_add_(axis, idx, src)
def _segment_sum(src, seg, n):
    out = torch.zeros((n,) + src.shape[1:], dtype=src.dtype)
    return out.index_add_(0, seg, src)
def _pad(x, pw):
    flat = tuple(v for pair in reversed(pw) for v in pair)
    return torch.nn.functional.pad(x, flat)

kernel_name = 'standalone__sequential_behavior_din__recsys'

def setup_inputs():

    _w = (lambda a: (lambda t: t.to(torch.bfloat16) if t.is_floating_point() else t)(torch.as_tensor(a)))
    B, L, D = 4096, 50, 64
    H = D
    return {
        "target": _w((lambda *s: torch.randn(*s, dtype=torch.bfloat16) * 3.2)(B, D)),
        "hist": _w((lambda *s: torch.randn(*s, dtype=torch.bfloat16) * 3.2)(B, L, D)),
        "mask": _w((lambda lo, hi, *s: torch.randint(lo, hi, s))(0, 2, B, L).to(float)),
        "w1": _w((lambda *s: torch.randn(*s, dtype=torch.bfloat16) * 3.2)(4 * D, H) * (4 * D) ** -0.5),
        "b1": _w((lambda *s: torch.randn(*s, dtype=torch.bfloat16) * 3.2)(H) * 0.1),
        "w2": _w((lambda *s: torch.randn(*s, dtype=torch.bfloat16) * 0.05)(H, 1) * H ** -0.5),
        "b2": _w((lambda *s: torch.randn(*s, dtype=torch.bfloat16) * 0.05)(1) * 0.1),
    }

def reference(target, hist, mask, w1, b1, w2, b2):
    L = hist.shape[1]
    tgt = (lambda x, n, axis: torch.repeat_interleave(x, n, dim=axis))(target[:, None, :], L, axis=1)
    feat = torch.concatenate([hist, tgt, hist - tgt, hist * tgt], axis=-1)
    h = _sigmoid(feat @ w1 + b1)
    scores = (h @ w2 + b2)[..., 0] * mask
    return torch.einsum('bl,bld->bd', scores, hist)
```

```python
HEADER = """; @launch grid=({gx},1,1) block=({bx},1,1) lds={lds}
.amdgcn_target "amdgcn-amd-amdhsa--gfx950"
.text
.globl standalone__sequential_behavior_din__recsys_kernel
.p2align 8
.type standalone__sequential_behavior_din__recsys_kernel,@function
standalone__sequential_behavior_din__recsys_kernel:
"""
FOOTER = """
.section .rodata,"a"
.p2align 6
.amdhsa_kernel standalone__sequential_behavior_din__recsys_kernel
  .amdhsa_next_free_vgpr {vgpr}
  .amdhsa_next_free_sgpr {sgpr}
  .amdhsa_accum_offset {acc}
  .amdhsa_group_segment_fixed_size 0
  .amdhsa_kernarg_size 80
  .amdhsa_user_sgpr_count 2
  .amdhsa_user_sgpr_kernarg_segment_ptr 1
  .amdhsa_system_sgpr_workgroup_id_x 1
.end_amdhsa_kernel
"""
def wrap(body, gx, bx, lds, vgpr=128, sgpr=96):
    acc = (vgpr + 3) // 4 * 4
    return HEADER.format(gx=gx, bx=bx, lds=lds) + body + FOOTER.format(vgpr=vgpr, sgpr=sgpr, acc=acc)
```

```python
import sys, struct
from gen_common import wrap

def f32bits(x): return struct.unpack("<I", struct.pack("<f", x))[0]
LOG2E = 1.4426950408889634
S_FULL = f32bits(-LOG2E); S_HALF = f32bits(-LOG2E * 0.5)

HIST = 0; HW = 8192
WB = 131072
BIAS = WB + 16384; BSTR = 272
TBL = BIAS + 16 * BSTR
TL = TBL + 16 * 256
SM = TL + 2048
LDS_TOTAL = SM + 256

out = []
def e(s): out.append("    " + s)
def lab(s): out.append(s + ":")
uid = [0]
def wait_tiles(sreg, extra=0):
    uid[0] += 1; k = uid[0]
    for n in (1, 0, 2, 3):
        e(f"s_cmp_eq_u32 {sreg}, {n}")
        e(f"s_cbranch_scc1 L_w{k}_{n}")
    e(f"s_waitcnt vmcnt({8+extra})"); e(f"s_branch L_w{k}_d")
    for n in (3, 2, 0):
        lab(f"L_w{k}_{n}"); e(f"s_waitcnt vmcnt({2*n+extra})"); e(f"s_branch L_w{k}_d")
    lab(f"L_w{k}_1"); e(f"s_waitcnt vmcnt({2+extra})")
    lab(f"L_w{k}_d")

def v(b, n=1): return f"v{b}" if n == 1 else f"v[{b}:{b+n-1}]"

LANE, G, U, VM, T1, T2, T3 = 1, 2, 3, 4, 5, 6, 7
SWE, SWO, TBLRD, HA0, HA1, TR0, TR1, MT, WBA, BIASA, OUTO, VAL = 8, 9, 10, 11, 12, 13, 14, 15, 16, 17, 18, 19
BI = 20; APA = 24; APB = 28; M0R, M1R = 32, 33; TADDR, W2A = 34, 35
WEFF = 36
Z = 68; HB = 84; TRV = 92; MENT = 100; W2V = 104; B2V = 112; ACC = 116; SC = 120; SPK = 124
AWD = 36; AWAC = 40; IDX = 44; DA0, DA1 = 52, 53; PK = 52
ABC = 56; TROW = 72; B1RAW = 80; BPM = 84; DBC = 88; WBC = 104; B1F = 112; DB = 116; DD = 120; DAC = 124
TCH = 68; STG = 76; DP = 108

e("s_cmp_ge_u32 s2, 256")
e("s_cbranch_scc1 L_end")
e("s_load_dwordx16 s[4:19], s[0:1], 0")
e(f"v_lshrrev_b32 {v(T1)}, 6, v0")
e(f"v_and_b32 {v(LANE)}, 63, v0")
e(f"v_readfirstlane_b32 s20, {v(T1)}")
e(f"v_lshlrev_b32 {v(OUTO)}, 1, {v(LANE)}")
e("s_lshl_b32 s21, s2, 4")
e("s_add_u32 s21, s21, s20")
e("s_mul_i32 s22, s21, 100")
e("s_mul_i32 s23, s21, 6400")
e("s_mov_b32 s26, 100")
e("s_mov_b32 s27, 0x20000")
e("s_lshr_b32 s41, s20, 3"); e("s_lshl_b32 s41, s41, 12")
e("s_and_b32 s45, s20, 4"); e("s_lshl_b32 s45, s45, 7"); e("s_add_u32 s41, s41, s45")
e("s_and_b32 s45, s20, 3"); e("s_lshl_b32 s45, s45, 5"); e("s_add_u32 s41, s41, s45")
e(f"v_and_b32 {v(T1)}, 12, {v(LANE)}"); e(f"v_lshlrev_b32 {v(T1)}, 8, {v(T1)}")
e(f"v_and_b32 {v(T2)}, 3, {v(LANE)}"); e(f"v_lshlrev_b32 {v(T2)}, 7, {v(T2)}")
e(f"v_and_b32 {v(T3)}, 16, {v(LANE)}")
e(f"v_or3_b32 {v(T1)}, {v(T1)}, {v(T2)}, {v(T3)}")
e(f"v_and_b32 {v(T2)}, 32, {v(LANE)}")
e(f"v_lshlrev_b32 {v(T3)}, 9, {v(T2)}")
e(f"v_add_u32 {v(DA1)}, {v(T1)}, {v(T3)}")
e(f"v_add_u32 {v(DA0)}, 24576, {v(T1)}")
e("s_waitcnt lgkmcnt(0)")
e("s_add_u32 s24, s8, s22")
e("s_addc_u32 s25, s9, 0")
e(f"buffer_load_ushort {v(VM)}, {v(OUTO)}, s[24:27], 0 offen")
e("s_add_u32 s36, s10, s41")
e("s_addc_u32 s37, s11, 0")
e(f"global_load_dwordx4 {v(AWD,4)}, {v(DA0)}, s[36:37]")
e(f"global_load_dwordx4 {v(AWAC,4)}, {v(DA1)}, s[36:37]")
e(f"v_lshrrev_b32 {v(G)}, 4, {v(LANE)}")
e(f"v_and_b32 {v(U)}, 15, {v(LANE)}")
e("s_lshl_b32 s45, s2, 11")
e("s_add_u32 s32, s4, s45")
e("s_addc_u32 s33, s5, 0")
e("s_mov_b32 s34, 2048")
e("s_mov_b32 s35, 0x20000")
e("s_cmp_lt_u32 s20, 4")
e("s_cbranch_scc0 L_notbias")
e(f"v_lshlrev_b32 {v(T3)}, 8, {v(T2)}")
e(f"v_add3_u32 {v(DA0)}, {v(T1)}, {v(T3)}, 0")
e(f"v_add_u32 {v(DA0)}, 8192, {v(DA0)}")
e(f"v_add_u32 {v(DA1)}, 4096, {v(DA0)}")
e(f"global_load_dwordx4 {v(ABC,4)}, {v(DA0)}, s[36:37]")
e(f"global_load_dwordx4 {v(ABC+4,4)}, {v(DA0)}, s[36:37] offset:512")
e(f"global_load_dwordx4 {v(ABC+8,4)}, {v(DA1)}, s[36:37]")
e(f"global_load_dwordx4 {v(ABC+12,4)}, {v(DA1)}, s[36:37] offset:512")
e(f"v_lshlrev_b32 {v(T2)}, 7, {v(U)}")
e(f"v_lshl_add_u32 {v(T2)}, {v(G)}, 4, {v(T2)}")
e(f"global_load_dwordx4 {v(TROW,4)}, {v(T2)}, s[32:33]")
e(f"global_load_dwordx4 {v(TROW+4,4)}, {v(T2)}, s[32:33] offset:64")
e("s_lshl_b32 s45, s20, 5")
e(f"v_lshl_add_u32 {v(T2)}, {v(G)}, 3, s45")
e(f"global_load_dwordx2 {v(B1RAW,2)}, {v(T2)}, s[12:13]")
e("s_mov_b32 s56, 9")
e("s_branch L_roles_done")
lab("L_notbias")
e("s_mov_b32 s56, 2")
e("s_cmp_eq_u32 s20, 4")
e("s_cbranch_scc0 L_not4")
e(f"s_mov_b32 m0, {TL}")
e(f"v_lshlrev_b32 {v(T2)}, 4, {v(LANE)}")
e(f"buffer_load_dwordx4 {v(T2)}, s[32:35], 0 offen lds")
e(f"buffer_load_dwordx4 {v(T2)}, s[32:35], 0 offen offset:1024 lds")
e("s_mov_b32 s56, 4")
e("s_branch L_roles_done")
lab("L_not4")
e("s_cmp_eq_u32 s20, 5")
e("s_cbranch_scc0 L_roles_done")
e("s_mov_b32 s32, s14")
e("s_mov_b32 s33, s15")
e("s_mov_b32 s34, 128")
e(f"s_mov_b32 m0, {SM}")
e(f"v_lshlrev_b32 {v(T2)}, 2, {v(LANE)}")
e(f"buffer_load_dword {v(T2)}, s[32:35], 0 offen lds")
e("s_mov_b32 s56, 3")
lab("L_roles_done")
e("s_add_u32 s28, s6, s23")
e("s_addc_u32 s29, s7, 0")
e("s_movk_i32 s30, 6400")
e("s_mov_b32 s31, 0x20000")
e("s_lshl_b32 s45, s21, 7")
e("s_add_u32 s38, s18, s45")
e("s_addc_u32 s39, s19, 0")
e("s_lshl_b32 s42, s20, 13")
e("s_lshl_b32 s43, s20, 8")
e(f"s_add_u32 s43, s43, {TBL}")
e(f"v_lshl_add_u32 {v(T1)}, {v(LANE)}, 2, s43")
e(f"v_mov_b32 {v(T2)}, 0xff")
e(f"ds_write_b32 {v(T1)}, {v(T2)}")
e(f"v_and_b32 {v(T1)}, 7, {v(LANE)}")
e(f"v_lshrrev_b32 {v(T2)}, 2, {v(LANE)}")
e(f"v_and_b32 {v(T2)}, 4, {v(T2)}")
e(f"v_xor_b32 {v(T1)}, {v(T1)}, {v(T2)}")
e(f"v_lshlrev_b32 {v(SWE)}, 4, {v(T1)}")
e(f"v_xor_b32 {v(SWO)}, 32, {v(SWE)}")
e(f"v_lshrrev_b32 {v(T1)}, 1, {v(LANE)}")
e(f"v_and_b32 {v(T1)}, 0x1c, {v(T1)}")
e(f"v_add_u32 {v(TBLRD)}, s43, {v(T1)}")
e(f"v_lshlrev_b32 {v(T1)}, 1, {v(LANE)}"); e(f"v_and_b32 {v(T1)}, 4, {v(T1)}")
e(f"v_lshrrev_b32 {v(T2)}, 2, {v(LANE)}"); e(f"v_and_b32 {v(T2)}, 2, {v(T2)}")
e(f"v_or_b32 {v(T1)}, {v(T1)}, {v(T2)}")
e(f"v_xor_b32 {v(T1)}, {v(T1)}, {v(G)}")
e(f"v_lshlrev_b32 {v(T1)}, 4, {v(T1)}")
e(f"v_lshl_add_u32 {v(T1)}, {v(U)}, 7, {v(T1)}")
e(f"v_add_u32 {v(HA0)}, s42, {v(T1)}")
e(f"v_xor_b32 {v(HA1)}, 64, {v(HA0)}")
e(f"v_lshrrev_b32 {v(T1)}, 1, {v(LANE)}")
e(f"v_and_b32 {v(T2)}, 5, {v(T1)}")
e(f"v_lshlrev_b32 {v(T3)}, 1, {v(G)}")
e(f"v_xor_b32 {v(T2)}, {v(T2)}, {v(T3)}")
e(f"v_lshlrev_b32 {v(T2)}, 4, {v(T2)}")
e(f"v_lshrrev_b32 {v(T1)}, 2, {v(U)}")
e(f"v_lshl_add_u32 {v(T2)}, {v(T1)}, 7, {v(T2)}")
e(f"v_and_b32 {v(T1)}, 1, {v(LANE)}")
e(f"v_lshl_add_u32 {v(T2)}, {v(T1)}, 3, {v(T2)}")
e(f"v_add_u32 {v(TR0)}, s42, {v(T2)}")
e(f"v_xor_b32 {v(TR1)}, 32, {v(TR0)}")
e(f"v_lshl_add_u32 {v(MT)}, {v(G)}, 4, s43")
e(f"s_mul_i32 s45, s20, {BSTR}"); e(f"s_add_u32 s45, s45, {BIAS}")
e(f"v_lshl_add_u32 {v(BIASA)}, {v(G)}, 4, s45")
e("s_lshl_b32 s45, s20, 7"); e(f"s_add_u32 s45, s45, {TL}")
e(f"v_lshl_add_u32 {v(TADDR)}, {v(G)}, 4, s45")
e(f"s_mov_b32 s45, {WB}")
e(f"v_lshl_add_u32 {v(WBA)}, {v(LANE)}, 4, s45")
e(f"s_mov_b32 s45, {SM}")
e(f"v_lshl_add_u32 {v(W2A)}, {v(G)}, 3, s45")
e(f"v_lshrrev_b32 {v(T1)}, 1, {v(LANE)}"); e(f"v_and_b32 {v(T1)}, 8, {v(T1)}")
e(f"v_xor_b32 {v(T1)}, {v(T1)}, {v(U)}")
e(f"v_lshrrev_b32 {v(T2)}, 1, {v(T1)}")
e(f"v_and_b32 {v(T3)}, 1, {v(LANE)}"); e(f"v_lshlrev_b32 {v(T3)}, 4, {v(T3)}")
e("s_movk_i32 s45, 0x3f80")
e(f"v_lshlrev_b32_e64 {v(VAL)}, {v(T3)}, s45")
for r in range(4): e(f"v_cmp_eq_u32_e64 s[{48+2*r}:{49+2*r}], {r}, {v(T2)}")
e(f"v_lshrrev_b32 {v(T1)}, 2, {v(LANE)}")
e(f"v_xor_b32 {v(T1)}, {v(T1)}, {v(G)}")
e(f"v_and_b32 {v(T1)}, 3, {v(T1)}")
e(f"v_lshlrev_b32 {v(T1)}, 1, {v(T1)}")
e(f"v_bfe_u32 {v(T2)}, {v(LANE)}, 1, 1")
e(f"v_or_b32 {v(T1)}, {v(T1)}, {v(T2)}")
for r in range(4): e(f"v_cndmask_b32_e64 {v(BI+r)}, 0, {v(VAL)}, s[{48+2*r}:{49+2*r}]")
e(f"v_cmp_eq_u32_e64 s[58:59], 0, {v(T1)}")
e(f"v_cmp_eq_u32_e64 s[60:61], 1, {v(T1)}")
e("s_mov_b32 s45, 0xffff")
e(f"v_lshlrev_b32_e64 {v(T2)}, {v(T3)}, s45")
e("s_mov_b32 s46, 0x%08x" % S_FULL)
e("s_mov_b32 s47, 0x%08x" % S_HALF)
e(f"v_cndmask_b32_e64 {v(M0R)}, 0, {v(T2)}, s[58:59]")
e(f"v_cndmask_b32_e64 {v(M1R)}, 0, {v(T2)}, s[60:61]")
e(f"v_cndmask_b32_e64 {v(APA+2)}, 0, {v(VAL)}, s[58:59]")
e(f"v_cndmask_b32_e64 {v(APA+3)}, 0, {v(VAL)}, s[60:61]")
e(f"v_cndmask_b32_e64 {v(APB+2)}, 0, {v(VAL)}, s[58:59]")
e(f"v_cndmask_b32_e64 {v(APB+3)}, 0, {v(VAL)}, s[60:61]")
e("s_cmp_eq_u32 s56, 2"); e("s_cbranch_scc1 L_mw2")
e("s_cmp_eq_u32 s56, 9"); e("s_cbranch_scc1 L_mw9")
e("s_cmp_eq_u32 s56, 4"); e("s_cbranch_scc1 L_mw4")
e("s_waitcnt vmcnt(3)"); e("s_branch L_mwd")
lab("L_mw4"); e("s_waitcnt vmcnt(4)"); e("s_branch L_mwd")
lab("L_mw9"); e("s_waitcnt vmcnt(9)"); e("s_branch L_mwd")
lab("L_mw2"); e("s_waitcnt vmcnt(2)")
lab("L_mwd")
e(f"v_and_b32 {v(T1)}, 0x7fff, {v(VM)}")
e(f"v_cmp_ne_u32 vcc, 0, {v(T1)}")
e(f"v_lshl_or_b32 {v(VM)}, {v(VM)}, 16, {v(LANE)}")
e("s_bcnt1_i32_b64 s41, vcc")
e(f"v_mbcnt_lo_u32_b32 {v(T1)}, vcc_lo, 0")
e(f"v_mbcnt_hi_u32_b32 {v(T1)}, vcc_hi, {v(T1)}")
e(f"v_lshl_add_u32 {v(T1)}, {v(T1)}, 2, s43")
e("s_mov_b64 exec, vcc")
e(f"ds_write_b32 {v(T1)}, {v(VM)}")
e("s_mov_b64 exec, -1")
for q in range(8): e(f"ds_read_u8 {v(IDX+q)}, {v(TBLRD)} offset:{32*q}")
e("s_add_u32 s40, s41, 15")
e("s_lshr_b32 s40, s40, 4")
e("s_mov_b32 m0, s42")
for q in range(8):
    if q % 2 == 0:
        e(f"s_cmp_le_u32 s40, {q//2}"); e("s_cbranch_scc1 L_dma_done")
        e(f"s_waitcnt lgkmcnt({6-q})")
    e(f"v_lshl_add_u32 {v(DA0 + (q&1))}, {v(IDX+q)}, 7, {v(SWO if q&1 else SWE)}")
    e(f"buffer_load_dwordx4 {v(DA0 + (q&1))}, s[28:31], 0 offen lds")
    if q < 7: e("s_add_u32 m0, m0, 1024")
lab("L_dma_done")
e("s_waitcnt lgkmcnt(0)")
e("s_load_dword s44, s[16:17], 0")
wait_tiles("s40")
e(f"v_mfma_f32_16x16x32_bf16 {v(DD,4)}, {v(AWD,4)}, {v(BI,4)}, 0")
e(f"v_mfma_f32_16x16x32_bf16 {v(DAC,4)}, {v(AWAC,4)}, {v(BI,4)}, 0")
e("s_cmp_lt_u32 s20, 4")
e("s_cbranch_scc0 L_nobias2")
e(f"v_and_b32 {v(T1)}, 32, {v(LANE)}")
e(f"v_lshlrev_b32 {v(T1)}, 10, {v(T1)}")
e(f"v_or_b32 {v(T1)}, 0x3f80, {v(T1)}")
e(f"v_lshlrev_b32 {v(T1)}, {v(T3)}, {v(T1)}")
for r in range(4): e(f"v_cndmask_b32_e64 {v(BPM+r)}, 0, {v(T1)}, s[{48+2*r}:{49+2*r}]")
e(f"v_lshlrev_b32 {v(B1F)}, 16, {v(B1RAW)}")
e(f"v_and_b32 {v(B1F+1)}, 0xffff0000, {v(B1RAW)}")
for T in range(4): e(f"v_mfma_f32_16x16x32_bf16 {v(DBC+4*T,4)}, {v(ABC+4*T,4)}, {v(BPM,4)}, 0")
e(f"v_lshlrev_b32 {v(B1F+2)}, 16, {v(B1RAW+1)}")
e(f"v_and_b32 {v(B1F+3)}, 0xffff0000, {v(B1RAW+1)}")
e(f"v_mul_u32_u24 {v(T1)}, {BSTR}, {v(U)}")
e(f"v_lshl_add_u32 {v(T1)}, {v(G)}, 4, {v(T1)}")
e("s_lshl_b32 s45, s20, 6"); e(f"s_add_u32 s45, s45, {BIAS}")
e(f"v_add_u32 {v(T1)}, s45, {v(T1)}")
e("s_nop 1")
for T in range(4):
    e(f"v_cvt_pk_bf16_f32 {v(WBC+2*T)}, {v(DBC+4*T)}, {v(DBC+4*T+1)}")
    e(f"v_cvt_pk_bf16_f32 {v(WBC+2*T+1)}, {v(DBC+4*T+2)}, {v(DBC+4*T+3)}")
e("s_nop 1")
e(f"v_mfma_f32_16x16x32_bf16 {v(DB,4)}, {v(WBC,4)}, {v(TROW,4)}, {v(B1F,4)}")
e(f"v_mfma_f32_16x16x32_bf16 {v(DB,4)}, {v(WBC+4,4)}, {v(TROW+4,4)}, {v(DB,4)}")
e("s_nop 7")
for r in range(4): e(f"v_mul_f32 {v(DB+r)}, s46, {v(DB+r)}")
e(f"ds_write_b128 {v(T1)}, {v(DB,4)}")
lab("L_nobias2")
e("s_lshl_b32 s45, s20, 10")
e(f"v_add_u32 {v(T1)}, s45, {v(WBA)}")
e("s_nop 6")
for r in range(4): e(f"v_mul_f32 {v(DD+r)}, s47, {v(DD+r)}")
for r in range(4): e(f"v_mul_f32 {v(DAC+r)}, s46, {v(DAC+r)}")
e(f"v_cvt_pk_bf16_f32 {v(PK)}, {v(DD)}, {v(DD+1)}")
e(f"v_cvt_pk_bf16_f32 {v(PK+1)}, {v(DD+2)}, {v(DD+3)}")
e(f"v_cvt_pk_bf16_f32 {v(PK+2)}, {v(DAC)}, {v(DAC+1)}")
e(f"v_cvt_pk_bf16_f32 {v(PK+3)}, {v(DAC+2)}, {v(DAC+3)}")
e(f"ds_write_b128 {v(T1)}, {v(PK,4)}")
e("s_waitcnt lgkmcnt(0)")
e("s_barrier")
e(f"ds_read_b128 {v(TCH,4)}, {v(TADDR)}")
e(f"ds_read_b128 {v(TCH+4,4)}, {v(TADDR)} offset:64")
def stage_reads(T):
    for jt in range(4):
        e(f"ds_read_b128 {v(STG + 16*(T&1) + 4*jt, 4)}, {v(WBA)} offset:{(T*4+jt)*1024}")
stage_reads(0); stage_reads(1)
e("s_lshl_b32 s44, s44, 16")
e("s_waitcnt lgkmcnt(8)")
def aprime(T):
    ap = APB if T & 1 else APA
    ks, half = T >> 1, T & 1
    e(f"v_and_b32 {v(ap)}, {v(TCH+4*ks+2*half)}, {v(M0R)}")
    e(f"v_and_b32 {v(ap+1)}, {v(TCH+4*ks+2*half+1)}, {v(M1R)}")
aprime(0); aprime(1)
for T in range(4):
    ap = APB if T & 1 else APA
    ks, half = T >> 1, T & 1
    e(f"s_waitcnt lgkmcnt({4 if T < 3 else 0})")
    for jt in range(4):
        e(f"v_mfma_f32_16x16x32_bf16 {v(DP+4*jt,4)}, {v(ap,4)}, {v(STG+16*(T&1)+4*jt,4)}, 0")
    if T < 2:
        stage_reads(T + 2)
        aprime(T + 2)
    else:
        e("s_nop 5")
    for jt in range(4):
        d = WEFF + (jt*2+ks)*4 + 2*half
        e(f"v_cvt_pk_bf16_f32 {v(d)}, {v(DP+4*jt)}, {v(DP+4*jt+1)}")
        e(f"v_cvt_pk_bf16_f32 {v(d+1)}, {v(DP+4*jt+2)}, {v(DP+4*jt+3)}")
e(f"ds_read2_b64 {v(W2V,4)}, {v(W2A)} offset0:0 offset1:4")
e(f"ds_read2_b64 {v(W2V+4,4)}, {v(W2A)} offset0:8 offset1:12")
for r in range(4): e(f"v_mov_b32 {v(B2V+r)}, s44")
for r in range(4): e(f"v_mov_b32 {v(ACC+r)}, 0")
e("s_cmp_eq_u32 s40, 0")
e("s_cbranch_scc1 L_out")
e("s_sub_u32 s45, s40, 1")
lab("L_tile")
for jt in range(4): e(f"ds_read_b128 {v(Z+4*jt,4)}, {v(BIASA)} offset:{64*jt}")
e(f"ds_read_b128 {v(MENT,4)}, {v(MT)}")
wait_tiles("s45")
e(f"ds_read_b128 {v(HB,4)}, {v(HA0)}")
e(f"ds_read_b128 {v(HB+4,4)}, {v(HA1)}")
e(f"ds_read_b64_tr_b16 {v(TRV,2)}, {v(TR0)}")
e(f"ds_read_b64_tr_b16 {v(TRV+2,2)}, {v(TR0)} offset:512")
e(f"ds_read_b64_tr_b16 {v(TRV+4,2)}, {v(TR1)} offset:1024")
e(f"ds_read_b64_tr_b16 {v(TRV+6,2)}, {v(TR1)} offset:1536")
e("s_waitcnt lgkmcnt(4)")
for jt in range(4):
    e(f"v_mfma_f32_16x16x32_bf16 {v(Z+4*jt,4)}, {v(WEFF+(jt*2)*4,4)}, {v(HB,4)}, {v(Z+4*jt,4)}")
    e(f"v_mfma_f32_16x16x32_bf16 {v(Z+4*jt,4)}, {v(WEFF+(jt*2+1)*4,4)}, {v(HB+4,4)}, {v(Z+4*jt,4)}")
for r in range(4): e(f"v_and_b32 {v(MENT+r)}, 0xffff0000, {v(MENT+r)}")
e(f"v_add_u32 {v(HA0)}, 2048, {v(HA0)}")
e(f"v_add_u32 {v(HA1)}, 2048, {v(HA1)}")
e(f"v_add_u32 {v(TR0)}, 2048, {v(TR0)}")
e(f"v_add_u32 {v(TR1)}, 2048, {v(TR1)}")
e(f"v_add_u32 {v(MT)}, 64, {v(MT)}")
for i in range(16): e(f"v_exp_f32 {v(Z+i)}, {v(Z+i)}")
for i in range(16): e(f"v_add_f32 {v(Z+i)}, 1.0, {v(Z+i)}")
for i in range(16): e(f"v_rcp_f32 {v(Z+i)}, {v(Z+i)}")
for p in range(2):
    for i in range(4): e(f"v_cvt_pk_bf16_f32 {v(Z+8*p+i)}, {v(Z+8*p+2*i)}, {v(Z+8*p+2*i+1)}")
e("s_nop 1")
e(f"v_mfma_f32_16x16x32_bf16 {v(SC,4)}, {v(Z,4)}, {v(W2V,4)}, {v(B2V,4)}")
e(f"v_mfma_f32_16x16x32_bf16 {v(SC,4)}, {v(Z+8,4)}, {v(W2V+4,4)}, {v(SC,4)}")
e("s_nop 7")
for r in range(4): e(f"v_mul_f32 {v(SC+r)}, {v(SC+r)}, {v(MENT+r)}")
e(f"v_cvt_pk_bf16_f32 {v(SPK)}, {v(SC)}, {v(SC+1)}")
e(f"v_cvt_pk_bf16_f32 {v(SPK+1)}, {v(SC+2)}, {v(SC+3)}")
e("s_waitcnt lgkmcnt(0)")
e("s_nop 0")
for kk in range(4):
    e(f"v_mfma_f32_4x4x4_16b_bf16 {v(ACC,4)}, {v(SPK,2)}, {v(TRV+2*kk,2)}, {v(ACC,4)} cbsz:4 abid:{4*kk}")
    if kk < 3: e("s_nop 1")
e("s_cmp_eq_u32 s45, 0")
e("s_sub_u32 s45, s45, 1") if False else None
e("s_cbranch_scc1 L_out")
e("s_sub_u32 s45, s45, 1")
e("s_branch L_tile")
lab("L_out")
e("s_nop 4")
e(f"v_cvt_pk_bf16_f32 {v(T1)}, {v(ACC)}, {v(ACC)}")
e(f"global_store_short {v(OUTO)}, {v(T1)}, s[38:39]")
lab("L_end")
e("s_endpgm")
body = "\n".join(out) + "\n"
name = sys.argv[1] if len(sys.argv) > 1 else "k1.s"
open(name, "w").write(wrap(body, 256, 1024, LDS_TOTAL, vgpr=128, sgpr=72))
print("wrote", name, "lds", LDS_TOTAL, "lines", len(out))
```
